```python
import torch

def _softmax(x, axis=-1):
    return torch.softmax(x, dim=axis)
def _gelu(x):
    return torch.nn.functional.gelu(x, approximate="tanh")
def _silu(x):
    return torch.nn.functional.silu(x)
def _sigmoid(x):
    return torch.sigmoid(x)
def _layernorm(x, axis=-1, eps=1e-5):
    m = x.mean(dim=axis, keepdim=True)
    v = x.var(dim=axis, keepdim=True, unbiased=False)
    return (x - m) / torch.sqrt(v + eps)
def _scatter_add(tgt, idx, src, axis=0):
    return tgt.clone().index_add_(axis, idx, src)
def _segment_sum(src, seg, n):
    out = torch.zeros((n,) + src.shape[1:], dtype=src.dtype)
    return out.index_add_(0, seg, src)
def _pad(x, pw):
    flat = tuple(v for pair in reversed(pw) for v in pair)
    return torch.nn.functional.pad(x, flat)

kernel_name = 'standalone__low_rank_proj_linformer__sampling'

def setup_inputs():

    _w = (lambda a: (lambda t: t.to(torch.bfloat16) if t.is_floating_point() else t)(torch.as_tensor(a)))
    B, H, Sq, Skv, Dh, R = 16, 32, 4, 4096, 128, 16
    return {
        "q": _w((lambda *s: torch.randn(*s, dtype=torch.bfloat16) * 0.8)(B, H, Sq, Dh)),
        "k": _w((lambda *s: torch.randn(*s, dtype=torch.bfloat16) * 0.8)(B, H, Skv, Dh)),
        "v": _w((lambda *s: torch.randn(*s, dtype=torch.bfloat16) * 0.05)(B, H, Skv, Dh)),
        "e_proj": _w((lambda *s: torch.randn(*s, dtype=torch.bfloat16) * 0.8)(R, Skv) * (Skv ** -0.5)),
        "f_proj": _w((lambda *s: torch.randn(*s, dtype=torch.bfloat16) * 0.05)(R, Skv) * (Skv ** -0.5)),
    }

def reference(q, k, v, e_proj, f_proj):
    B, H, Sq, Dh = q.shape
    kp = torch.einsum("rn,bhnd->bhrd", e_proj, k)
    vp = torch.einsum("rn,bhnd->bhrd", f_proj, v)
    scores = torch.einsum("bhqd,bhrd->bhqr", q, kp) * (Dh ** -0.5)
    p = _softmax(scores, axis=-1)
    o = torch.einsum("bhqr,bhrd->bhqd", p, vp)
    return o
```

```python
import sys

HDR = """; Kernarg layout for this problem (64 bytes, ptrs only, base s[0:1]):
"""
NAME = "standalone__low_rank_proj_linformer__sampling_kernel"

def gen(D1=14, D2=16, nb=4, pol="nt", polE="", lds=98304, stamps=0, xmap=0, noE=0, D0=None, n0=0, prio=0, rot=0, pf=0, ra=0, rb=0, rm=7):
    o = []
    A = o.append
    G = 256
    A(HDR.rstrip())
    A(f"; @launch grid=({G},1,1) block=(128,1,1) lds={lds}")
    A('.amdgcn_target "amdgcn-amd-amdhsa--gfx950"')
    A(".text")
    A(f".globl {NAME}")
    A(".p2align 8")
    A(f".type {NAME},@function")
    A(f"{NAME}:")
    vLane, vOffD, vOffE, vLds = 0, 1, 2, 3
    T0, ACC, ER, LR = 8, 40, 72, 88
    P = 16
    def T(j, p): return T0 + 4*j + p
    def L(slot, h): return LR + 8*slot + 4*h
    def E(c): return ER + 4*(c & 3)
    nv = LR + 8*P
    vST = nv
    if stamps: nv += 3
    sD, sE, sSelLo, sSelHi, sWave, sLoop, sIt, sMat = 32, 33, 35, 36, 37, 38, 41, 51
    ST = 60
    if stamps:
        A(f"    s_memrealtime s[{ST}:{ST+1}]")
    A(f"    s_cmp_ge_u32 s2, {G}")
    A("    s_cbranch_scc1 L_end")
    A("    s_load_dwordx8 s[4:11], s[0:1], 0")
    A("    s_load_dwordx4 s[12:15], s[0:1], 32")
    if stamps:
        A("    s_load_dwordx2 s[54:55], s[0:1], 56")
    A(f"    v_readfirstlane_b32 s{sWave}, v0")
    A(f"    v_and_b32 v{vLane}, 63, v0")
    A(f"    v_lshrrev_b32 v4, 4, v{vLane}       ; g")
    A(f"    v_and_b32 v5, 15, v{vLane}          ; c")
    A(f"    v_lshlrev_b32 v{vOffD}, 11, v4")
    A(f"    v_lshl_add_u32 v{vOffD}, v5, 4, v{vOffD}   ; g*2048 + c*16")
    A(f"    v_lshlrev_b32 v{vOffE}, 13, v5")
    A(f"    v_lshl_add_u32 v{vOffE}, v4, 4, v{vOffE}   ; c*8192 + g*16")
    A(f"    v_lshlrev_b32 v{vLds}, 4, v{vLane}")
    if xmap == 0:
        A(f"    s_lshl_b32 s42, s2, 21")
        A(f"    s_lshl_b32 s43, s2, 11")
        bhstep = 1
    elif xmap == 1:
        A(f"    s_lshl_b32 s42, s2, 20")
        A(f"    s_lshl_b32 s43, s2, 10")
        bhstep = 256
    elif xmap in (2, 3):
        A(f"    s_and_b32 s42, s2, 7")
        A(f"    s_lshl_b32 s42, s42, {6 if xmap == 2 else 5}")
        A(f"    s_lshr_b32 s43, s2, 3")
        A(f"    s_add_u32 s43, s43, s42")
        A(f"    s_lshl_b32 s42, s43, 20")
        A(f"    s_lshl_b32 s43, s43, 10")
        bhstep = 32 if xmap == 2 else 256
    A("    s_mov_b32 s18, 0x100000")
    A("    s_mov_b32 s19, 0x20000")
    A("    s_mov_b32 s22, 0x20000")
    A("    s_mov_b32 s23, 0x20000")
    if rot == 0:
        A(f"    s_mov_b32 s39, 0")
    elif rot == 1:
        A(f"    s_lshr_b32 s39, s2, 3")
        A(f"    s_lshl_b32 s39, s39, 2")
        A(f"    s_and_b32 s3, s2, 3")
        A(f"    s_add_u32 s39, s39, s3")
        A(f"    s_lshl_b32 s39, s39, 13")
    elif rot == 2:
        A(f"    s_lshr_b32 s39, s2, 3")
        A(f"    s_and_b32 s39, s39, 7")
        A(f"    s_lshl_b32 s39, s39, 13")
    elif rot == 3:
        A(f"    s_lshr_b32 s39, s2, 3")
        A(f"    s_lshl_b32 s39, s39, 2")
        A(f"    s_bfe_u32 s3, s2, 0x20001")
        A(f"    s_add_u32 s39, s39, s3")
        A(f"    s_lshl_b32 s39, s39, 13")
    elif rot == 5:
        A(f"    s_lshr_b32 s39, s2, 3")
        A(f"    s_mul_i32 s39, s39, {ra}")
        A(f"    s_and_b32 s3, s2, {rm}")
        A(f"    s_mul_i32 s3, s3, {rb}")
        A(f"    s_add_u32 s39, s39, s3")
        A(f"    s_and_b32 s39, s39, 127")
        A(f"    s_lshl_b32 s39, s39, 13")
    elif rot == 4:
        A(f"    s_mul_i32 s39, s2, 37")
        A(f"    s_and_b32 s39, s39, 127")
        A(f"    s_lshl_b32 s39, s39, 13")
    A(f"    s_mov_b32 s{sD}, s39")
    A(f"    s_lshr_b32 s{sE}, s39, 7")
    A(f"    s_cmp_lg_u32 s{sWave}, 0")
    A("    s_waitcnt lgkmcnt(0)")
    A("    s_cbranch_scc1 L_helper")
    A("    s_add_u32 s16, s6, s42")
    A("    s_addc_u32 s17, s7, 0")
    A("    s_mov_b32 s20, s10")
    A("    s_mov_b32 s21, s11")

    uid = [0]
    def advance():
        uid[0] += 1
        u = uid[0]
        A(f"    s_add_u32 s{sD}, s{sD}, 0x2000")
        A(f"    s_and_b32 s{sD}, s{sD}, s40")
        A(f"    s_lshr_b32 s{sE}, s{sD}, 7")
        A(f"    s_cmp_lg_u32 s{sD}, s39")
        A(f"    s_cbranch_scc1 L_adv{u}")
        A(f"    s_add_u32 s56, s16, {(bhstep << 20)}")
        A(f"    s_addc_u32 s57, s17, 0")
        A(f"    s_mov_b64 s[16:17], s[24:25]")
        A(f"    s_mov_b64 s[24:25], s[56:57]")
        A(f"    s_mov_b64 s[56:57], s[20:21]")
        A(f"    s_mov_b64 s[20:21], s[26:27]")
        A(f"    s_mov_b64 s[26:27], s[56:57]")
        A(f"    s_add_u32 s{sMat}, s{sMat}, 1")
        A(f"    s_cmp_ge_u32 s{sMat}, 4")
        A(f"    s_cselect_b32 s18, 0, s18")
        A(f"    s_cselect_b32 s22, 0, s22")
        A(f"L_adv{u}:")
    def issue(x, first=False):
        p = x & 3
        slot = x % P
        for h in range(2):
            r = L(slot, h)
            A(f"    buffer_load_dwordx4 v[{r}:{r+3}], v{vOffD}, s[16:19], s{sD} offen offset:{256*(2*p+h)} {pol}".rstrip())
        if p == 3:
            e = E(x >> 2)
            if not noE:
                A(f"    buffer_load_dwordx4 v[{e}:{e+3}], v{vOffE}, s[20:23], s{sE} offen {polE}".rstrip())
            if first:
                A(f"    s_add_u32 s{sD}, s{sD}, 0x2000")
                A(f"    s_and_b32 s{sD}, s{sD}, 0xfffff")
                A(f"    s_lshr_b32 s{sE}, s{sD}, 7")
            else:
                advance()
    def nwait(u, D):
        return 2*(D-1) + (0 if noE else sum(1 for x in range(u+1, u+D) if (x & 3) == 3))
    Dstart = D0 if D0 is not None else D1
    for x in range(Dstart):
        issue(x, first=True)
    A("    s_add_u32 s24, s8, s42")
    A("    s_addc_u32 s25, s9, 0")
    A("    s_mov_b32 s26, s12")
    A("    s_mov_b32 s27, s13")
    A("    s_add_u32 s44, s14, s43")
    A("    s_addc_u32 s45, s15, 0")
    A("    s_mov_b32 s46, 1024")
    A("    s_mov_b32 s47, 0x20000")
    A(f"    s_mov_b32 s{sSelLo}, 0x05040100")
    A(f"    s_mov_b32 s{sSelHi}, 0x07060302")
    A(f"    s_mov_b32 s40, 0xfffff")
    A(f"    s_mov_b32 s{sMat}, 0")
    A(f"    s_mov_b32 s{sIt}, 0")
    if prio:
        A(f"    s_setprio {prio}")
    if stamps:
        A("    s_mov_b32 m0, 0")
        A(f"    v_mov_b32 v{vST}, 0")
        A(f"    v_mov_b32 v{vST+1}, 0")

    def mfma(j, c, isK):
        a = ACC + 4*j
        tt = f"v[{T(j,0)}:{T(j,3)}]"; ee = f"v[{E(c)}:{E(c)+3}]"
        if isK: return f"    v_mfma_f32_16x16x32_bf16 v[{a}:{a+3}], {tt}, {ee}, v[{a}:{a+3}]"
        return f"    v_mfma_f32_16x16x32_bf16 v[{a}:{a+3}], {ee}, {tt}, v[{a}:{a+3}]"
    def pairstep(u, D, isK, do_issue=True, Dw=None):
        p = u & 3
        slot = u % P
        A(f"    s_waitcnt vmcnt({nwait(u, D) if Dw is None else Dw})")
        if stamps and u == 15:
            A(f"    s_memrealtime s[{ST+12}:{ST+13}]")
        for j in range(8):
            w = j >> 1
            sel = sSelHi if (j & 1) else sSelLo
            A(f"    v_perm_b32 v{T(j,p)}, v{L(slot,1)+w}, v{L(slot,0)+w}, s{sel}")
        x = u + D
        eclash = (p == 3) and ((x & 3) == 3) and (E(x >> 2) == E(u >> 2))
        if do_issue and not eclash:
            issue(x)
        if p == 3:
            if not do_issue or eclash:
                pass
            for j in range(8):
                A(mfma(j, u >> 2, isK))
            if do_issue and eclash:
                issue(x)
    def loop(name, D, isK, count_reg_init):
        A(count_reg_init)
        A("    .p2align 3")
        A(f"L_{name}:")
        for u in range(16):
            pairstep(u, D, isK)
        if stamps:
            A("    s_waitcnt lgkmcnt(0)")
            A(f"    s_cmp_ge_u32 m0, 64")
            uid[0] += 1
            A(f"    s_cbranch_scc1 L_s{uid[0]}")
            A(f"    v_writelane_b32 v{vST}, s{ST+12}, m0")
            A(f"    s_branch L_t{uid[0]}")
            A(f"L_s{uid[0]}:")
            A(f"    v_writelane_b32 v{vST+1}, s{ST+12}, m0")
            A(f"L_t{uid[0]}:")
            A("    s_add_u32 m0, m0, 1")
        A(f"    s_sub_u32 s{sLoop}, s{sLoop}, 1")
        A(f"    s_cmp_lg_u32 s{sLoop}, 0")
        A(f"    s_cbranch_scc1 L_{name}")
    def zero_acc():
        for j in range(32):
            A(f"    v_mov_b32 v{ACC+j}, 0")
    zero_acc()
    A("L_bh:")
    loop("k", D1, True, f"    s_mov_b32 s{sLoop}, 32")
    A("    s_nop 7")
    for j in range(8):
        A(f"    ds_write_b128 v{vLds}, v[{ACC+4*j}:{ACC+4*j+3}] offset:{1024*j}")
    A("    s_waitcnt lgkmcnt(0)")
    A("    s_barrier")
    zero_acc()
    boost = D2 != D1 and nb > 0
    if boost:
        A(f"    s_cmp_eq_u32 s{sIt}, 0")
        A(f"    s_cselect_b32 s3, 32, {32-nb}")
        loop("v", D1, False, f"    s_mov_b32 s{sLoop}, s3")
        A(f"    s_cmp_eq_u32 s{sIt}, 0")
        A("    s_cbranch_scc1 L_vdone")
        for x in range(D1, D2):
            issue(x)
        loop("vb", D2, False, f"    s_mov_b32 s{sLoop}, {nb}")
        A("L_vdone:")
    else:
        loop("v", D1, False, f"    s_mov_b32 s{sLoop}, 32")
    A("    s_barrier")
    A(f"    ds_read_b64 v[4:5], v{vLds} offset:8192")
    A("    s_nop 5")
    R = T0
    for j in range(8):
        A(f"    v_cvt_pk_bf16_f32 v{R+2*j}, v{ACC+4*j}, v{ACC+4*j+1}")
        A(f"    v_cvt_pk_bf16_f32 v{R+2*j+1}, v{ACC+4*j+2}, v{ACC+4*j+3}")
    A("    s_waitcnt lgkmcnt(0)")
    for j in range(8):
        A(f"    v_mfma_f32_16x16x16_bf16 v[{ACC+4*j}:{ACC+4*j+3}], v[4:5], v[{R+2*j}:{R+2*j+1}], 0")
    A(f"    v_cmp_gt_u32 vcc, 16, v{vLane}")
    A("    s_nop 6")
    for i in range(4):
        for t in range(4):
            A(f"    v_cvt_pk_bf16_f32 v{R+16+4*i+t}, v{ACC+4*(2*t)+i}, v{ACC+4*(2*t+1)+i}")
    A("    s_and_saveexec_b64 s[52:53], vcc")
    for i in range(4):
        A(f"    buffer_store_dwordx4 v[{R+16+4*i}:{R+16+4*i+3}], v{vLds}, s[44:47], 0 offen offset:{256*i}")
    A("    s_mov_b64 exec, s[52:53]")
    A(f"    s_add_u32 s{sIt}, s{sIt}, 1")
    A(f"    s_cmp_ge_u32 s{sIt}, 2")
    A("    s_cbranch_scc1 L_fin")
    A(f"    s_add_u32 s44, s44, {bhstep*1024}")
    A("    s_addc_u32 s45, s45, 0")
    zero_acc()
    A("    s_branch L_bh")
    A("L_fin:")
    if stamps:
        A(f"    s_memrealtime s[{ST+8}:{ST+9}]")
        A(f"    s_getreg_b32 s{ST+10}, hwreg(HW_REG_HW_ID)")
        A(f"    s_getreg_b32 s{ST+11}, hwreg(HW_REG_XCC_ID)")
        A("    s_waitcnt lgkmcnt(0)")
        A(f"    s_lshl_b32 s3, s2, 11")
        A(f"    s_add_u32 s3, s3, 0x100000")
        A(f"    v_lshl_add_u32 v4, v{vLane}, 2, s3")
        A(f"    global_store_dword v4, v{vST}, s[54:55]")
        A(f"    global_store_dword v4, v{vST+1}, s[54:55] offset:256")
        A(f"    s_lshl_b32 s3, s2, 6")
        A(f"    v_mov_b32 v4, s3")
        for t in range(12):
            A(f"    v_mov_b32 v{16+t}, s{ST+t}")
        A("    s_mov_b64 exec, 1")
        for t in range(3):
            A(f"    global_store_dwordx4 v4, v[{16+4*t}:{19+4*t}], s[54:55] offset:{16*t}")
    A("L_end:")
    A("    s_endpgm")

    A("L_helper:")
    Q, KP, S = 48, 16, 8
    A("    s_add_u32 s28, s4, s43")
    A("    s_addc_u32 s29, s5, 0")
    A("    s_mov_b32 s30, 1024")
    A("    s_mov_b32 s31, 0x20000")
    A("    v_lshlrev_b32 v6, 8, v5")
    A("    v_lshl_add_u32 v6, v4, 6, v6       ; c*256 + g*64")
    A("    s_mov_b32 s48, 0x3db504f3     ; 128^-0.5 as f32")
    A("    s_mov_b32 s49, 0x3fb8aa3b     ; log2(e)")
    A("    s_mov_b32 s50, 0xffff0000")
    A(f"    v_xor_b32 v14, 16, v{vLane}")
    A(f"    v_lshlrev_b32 v14, 2, v14")
    A(f"    v_xor_b32 v15, 32, v{vLane}")
    A(f"    v_lshlrev_b32 v15, 2, v15")
    A(f"    s_mov_b32 s{sIt}, 0")
    if pf:
        A("    s_lshr_b32 s3, s2, 3")
        A("    s_lshl_b32 s3, s3, 12")
        A(f"    v_lshl_add_u32 v7, v{vLane}, 6, s3")
        if pf & 2:
            A("    global_load_dword v20, v7, s[10:11]")
        if pf & 1:
            A("    global_load_dword v21, v7, s[12:13]")
    A("L_hbh:")
    for m in range(4):
        A(f"    buffer_load_dwordx4 v[{Q+4*m}:{Q+4*m+3}], v6, s[28:31], 0 offen offset:{16*m}")
    A("    s_barrier")
    for j in range(8):
        A(f"    ds_read_b128 v[{KP+4*j}:{KP+4*j+3}], v{vLds} offset:{1024*j}")
    R = 64
    for i in range(4):
        A(f"    v_mov_b32 v{S+i}, 0")
    A("    s_waitcnt lgkmcnt(0)")
    for m in range(4):
        for t in range(4):
            A(f"    v_cvt_pk_bf16_f32 v{R+4*m+t}, v{KP+4*(2*t)+m}, v{KP+4*(2*t+1)+m}")
    A("    s_waitcnt vmcnt(0)")
    A("    s_nop 0")
    for m in range(4):
        A(f"    v_mfma_f32_16x16x32_bf16 v[{S}:{S+3}], v[{R+4*m}:{R+4*m+3}], v[{Q+4*m}:{Q+4*m+3}], v[{S}:{S+3}]")
    A("    s_nop 7")
    def rnd():
        A(f"    v_cvt_pk_bf16_f32 v12, v{S}, v{S+1}")
        A(f"    v_cvt_pk_bf16_f32 v13, v{S+2}, v{S+3}")
        A(f"    v_lshlrev_b32 v{S}, 16, v12")
        A(f"    v_and_b32 v{S+1}, s50, v12")
        A(f"    v_lshlrev_b32 v{S+2}, 16, v13")
        A(f"    v_and_b32 v{S+3}, s50, v13")
    rnd()
    for i in range(4):
        A(f"    v_mul_f32 v{S+i}, s48, v{S+i}")
    rnd()
    A(f"    v_max_f32 v12, v{S}, v{S+1}")
    A(f"    v_max3_f32 v12, v{S+2}, v{S+3}, v12")
    A("    ds_bpermute_b32 v13, v14, v12")
    A("    s_waitcnt lgkmcnt(0)")
    A("    v_max_f32 v12, v12, v13")
    A("    ds_bpermute_b32 v13, v15, v12")
    A("    s_waitcnt lgkmcnt(0)")
    A("    v_max_f32 v12, v12, v13")
    for i in range(4):
        A(f"    v_sub_f32 v{S+i}, v{S+i}, v12")
    for i in range(4):
        A(f"    v_mul_f32 v{S+i}, s49, v{S+i}")
    for i in range(4):
        A(f"    v_exp_f32 v{S+i}, v{S+i}")
    A("    s_nop 0")
    A(f"    v_add_f32 v12, v{S}, v{S+1}")
    A(f"    v_add_f32 v13, v{S+2}, v{S+3}")
    A("    v_add_f32 v12, v12, v13")
    A("    ds_bpermute_b32 v13, v14, v12")
    A("    s_waitcnt lgkmcnt(0)")
    A("    v_add_f32 v12, v12, v13")
    A("    ds_bpermute_b32 v13, v15, v12")
    A("    s_waitcnt lgkmcnt(0)")
    A("    v_add_f32 v12, v12, v13")
    A("    v_rcp_f32 v12, v12")
    A("    s_nop 0")
    for i in range(4):
        A(f"    v_mul_f32 v{S+i}, v{S+i}, v12")
    A(f"    v_cvt_pk_bf16_f32 v12, v{S}, v{S+1}")
    A(f"    v_cvt_pk_bf16_f32 v13, v{S+2}, v{S+3}")
    A(f"    ds_write_b64 v{vLds}, v[12:13] offset:8192")
    A("    s_waitcnt lgkmcnt(0)")
    A("    s_barrier")
    A(f"    s_add_u32 s28, s28, {bhstep*1024}")
    A("    s_addc_u32 s29, s29, 0")
    A(f"    s_add_u32 s{sIt}, s{sIt}, 1")
    A(f"    s_cmp_lt_u32 s{sIt}, 2")
    A("    s_cbranch_scc1 L_hbh")
    A("    s_endpgm")
    A('.section .rodata,"a"')
    A(".p2align 6")
    A(f".amdhsa_kernel {NAME}")
    A(f"  .amdhsa_next_free_vgpr {nv}")
    A("  .amdhsa_next_free_sgpr 80")
    A(f"  .amdhsa_accum_offset {(nv+3)//4*4}")
    A("  .amdhsa_group_segment_fixed_size 0")
    A("  .amdhsa_kernarg_size 64")
    A("  .amdhsa_user_sgpr_count 2")
    A("  .amdhsa_user_sgpr_kernarg_segment_ptr 1")
    A("  .amdhsa_system_sgpr_workgroup_id_x 1")
    A("  .amdhsa_float_denorm_mode_32 3")
    A(".end_amdhsa_kernel")
    return "\n".join(o) + "\n"

def main(gen):
    import build, os
    specs = []
    os.makedirs("v", exist_ok=True)
    for a in sys.argv[1:]:
        name, _, kv = a.partition(":")
        kw = {}
        for t in filter(None, kv.split(",")):
            k, _, v = t.partition("=")
            v = v.replace("+", " ")
            try: v = int(v)
            except ValueError: pass
            kw[k] = v
        p = f"v/{name}.s"
        open(p, "w").write(gen(**kw))
        specs.append(build.build(p))
    open("specs.txt", "w").write(" ".join(specs))
    print(str(["work/bench", "work/specs.txt"] + [s.split(":")[0] for s in specs]).replace("'", '"'))
if __name__ == "__main__":
    main(gen)
```

```python
import sys
from gen3 import HDR, NAME, main

def gen(levels="20/22/24/30", thr="-30/30/150", dflt=1, nb=1, pol="nt", polE="", lds=98304, stamps=0, ra=1, rb=0, rm=7, pf=1,
        oob=0, ctl=1, tau=2170, xmap=0, ep="2/8/16/24/32/40/48/56", nrep=8, hstore=1, pdelay=2, late=1, epos=4, pro=16, noE=0, hgate=0, first=-1, inl=0, endg=64, endsh=1, hic=0, polS='', single=0, midg=32, mini=0, order0=0, minic=0, pace=0):
    LV = [int(x) for x in str(levels).split("/")]
    TH = [int(x) for x in str(thr).split("/")]
    EP = [int(x) for x in str(ep).split("/")]
    assert len(TH) == len(LV) - 1 and LV[-1] <= 32

    o = []
    A = o.append
    G = 256
    A(HDR.rstrip())
    A(f"; @launch grid=({G},1,1) block=(128,1,1) lds={lds}")
    A('.amdgcn_target "amdgcn-amd-amdhsa--gfx950"')
    A(".text")
    A(f".globl {NAME}")
    A(".p2align 8")
    A(f".type {NAME},@function")
    A(f"{NAME}:")
    vLane, vOffD, vOffD2, vOffE, vLds = 0, 1, 2, 3, 6
    T0, ACC, ER, LR = 8, 40, 72, 104
    def T(j, p): return T0 + 4*j + p
    def L(slot, h): return LR + 8*slot + 4*h
    def E(buf, c): return ER + 16*buf + 4*c
    vW, vWA = 232, 233
    nv = 234
    vST = 234
    if stamps: nv = 238
    sD, sE, sJ, sSelLo, sSelHi, sWave, sLoop, sCnt, sPh, sMat = 32, 33, 34, 35, 36, 37, 38, 39, 41, 51
    sDbg, sNow, sNom, sRef, sEpo, sWord, sPend, sB, sRepM, sLag = 78, 80, 82, 83, 84, 85, 86, 87, 88, 89
    sEpM = 90
    ST = 60
    bhstep = 256 if xmap == 1 else (1 << (xmap - 10) if xmap >= 10 else 1)
    bhsh = 0 if (xmap == 1 or xmap >= 10) else 1
    LDS_P, LDS_V = 16384, 20480
    if stamps:
        A(f"    s_memrealtime s[{ST}:{ST+1}]")
    A("    s_load_dwordx8 s[4:11], s[0:1], 0")
    A("    s_load_dwordx8 s[12:19], s[0:1], 32")
    A(f"    s_cmp_ge_u32 s2, {G}")
    A("    s_cbranch_scc1 L_end")
    A(f"    v_readfirstlane_b32 s{sWave}, v0")
    A(f"    v_and_b32 v5, 15, v0                ; c")
    A(f"    v_bfe_u32 v4, v0, 4, 1              ; g0")
    A(f"    v_bfe_u32 v7, v0, 5, 1              ; g1")
    A(f"    v_lshlrev_b32 v{vOffD}, 4, v5")
    A(f"    v_lshl_add_u32 v{vOffD}, v4, 13, v{vOffD}")
    A(f"    v_lshl_add_u32 v{vOffD}, v7, 16, v{vOffD}   ; c*16 + g0*8K + g1*64K")
    A(f"    v_add_u32 v{vOffD2}, 0x1000, v{vOffD}")
    if xmap in (0, 1):
        sP = 2
    elif xmap >= 10:
        sP = 30
        b = xmap - 10
        A(f"    s_and_b32 s30, s2, {(1 << b) - 1}")
        A(f"    s_lshr_b32 s3, s2, {b}")
        A(f"    s_lshl_b32 s3, s3, {b + 1}")
        A("    s_or_b32 s30, s30, s3")
    else:
        sP = 30
        if xmap == 2:
            A("    s_and_b32 s30, s2, 7")
            A("    s_lshl_b32 s30, s30, 5")
            A("    s_lshr_b32 s3, s2, 3")
            A("    s_or_b32 s30, s30, s3")
        elif xmap == 3:
            A("    s_and_b32 s30, s2, 7")
            A("    s_lshl_b32 s30, s30, 4")
            A("    s_bfe_u32 s3, s2, 0x40003")
            A("    s_or_b32 s30, s30, s3")
            A("    s_and_b32 s3, s2, 0x80")
            A("    s_or_b32 s30, s30, s3")
        elif xmap == 4:
            A("    s_and_b32 s30, s2, 1")
            A("    s_lshr_b32 s3, s2, 3")
            A("    s_lshl_b32 s3, s3, 1")
            A("    s_or_b32 s30, s30, s3")
            A("    s_bfe_u32 s3, s2, 0x20001")
            A("    s_lshl_b32 s3, s3, 6")
            A("    s_or_b32 s30, s30, s3")
    A(f"    s_lshl_b32 s42, s{sP}, {20 + bhsh}")
    if ra or rb:
        A(f"    s_lshr_b32 s{sJ}, s2, 3")
        if ra != 1:
            A(f"    s_mul_i32 s{sJ}, s{sJ}, {ra}")
        if rb:
            A(f"    s_and_b32 s3, s2, {rm}")
            A(f"    s_mul_i32 s3, s3, {rb}")
            A(f"    s_add_u32 s{sJ}, s{sJ}, s3")
        if ra != 1 or rb:
            A(f"    s_and_b32 s{sJ}, s{sJ}, 31")
    else:
        A(f"    s_mov_b32 s{sJ}, 0")
    def setD():
        A(f"    s_and_b32 s3, s{sJ}, 3")
        A(f"    s_lshl_b32 s3, s3, 14")
        A(f"    s_lshr_b32 s{sD}, s{sJ}, 2")
        A(f"    s_lshl_b32 s{sD}, s{sD}, 17")
        A(f"    s_or_b32 s{sD}, s{sD}, s3")
        A(f"    s_lshr_b32 s{sE}, s{sD}, 7")
    setD()
    A(f"    s_mov_b32 s26, {0 if oob else 0x100000}")
    A("    s_mov_b32 s27, 0x20000")
    A(f"    s_cmp_lg_u32 s{sWave}, 0")
    A("    s_waitcnt lgkmcnt(0)")
    A("    s_cbranch_scc1 L_helper")
    A("    s_add_u32 s24, s6, s42")
    A("    s_addc_u32 s25, s7, 0")

    uid = [0]
    def lab():
        uid[0] += 1
        return uid[0]
    def ld(x, h):
        x %= 16
        c, p = x >> 2, x & 3
        r = L(x, h)
        off = 2048*(c & 1) + 256*(2*p + h)
        return f"    buffer_load_dwordx4 v[{r}:{r+3}], v{vOffD2 if c >= 2 else vOffD}, s[24:27], s{sD} offen offset:{off} {pol}".rstrip()
    def ldE(buf):
        for c in range(4):
            e = E(buf, c)
            A(f"    buffer_load_dwordx4 v[{e}:{e+3}], v{vOffE}, s[20:23], s{sE} offen offset:{16*c} {polE}".rstrip())
    def esetup():
        A(f"    v_lshlrev_b32 v{vOffE}, 13, v5")
        A(f"    v_lshl_add_u32 v{vOffE}, v4, 6, v{vOffE}")
        A(f"    v_lshl_add_u32 v{vOffE}, v7, 9, v{vOffE}    ; c*8192 + g0*64 + g1*512")
        A("    s_mov_b32 s20, s10")
        A("    s_mov_b32 s21, s11")
        A(f"    s_mov_b32 s22, {0 if noE else 0x20000}")
        A("    s_mov_b32 s23, 0x20000")
        ldE(0)
    for x in range(16):
        if x == epos: esetup()
        A(ld(x, 0)); A(ld(x, 1))
    if epos == 16: esetup()
    if stamps:
        A(f"    s_memrealtime s[{ST+2}:{ST+3}]")
    A("    s_add_u32 s28, s8, s42          ; V base")
    A("    s_addc_u32 s29, s9, 0")
    A(f"    s_lshl_b32 s43, s{sP}, {10 + bhsh}")
    A(f"    s_add_u32 s43, s43, {bhstep*1024}")
    A("    s_add_u32 s44, s14, s43")
    A("    s_addc_u32 s45, s15, 0")
    A(f"    s_mov_b32 s46, 1024")
    A("    s_mov_b32 s47, 0x20000")
    A(f"    s_mov_b32 s{sSelLo}, 0x05040100")
    A(f"    s_mov_b32 s{sSelHi}, 0x07060302")
    A(f"    s_mov_b32 s{sMat}, 0")
    A(f"    s_mov_b32 s{sCnt}, 0")
    A(f"    s_mov_b32 s{sPh}, 0")
    A(f"    s_mov_b32 s{sPend}, {2 if hgate else 0}")
    A(f"    s_mov_b32 s{sB}, 0")
    A(f"    s_mov_b32 s{sLoop}, 15")
    A(f"    v_lshlrev_b32 v{vLds}, 4, v0")
    if ctl:
        A(f"    s_mov_b64 s[{sDbg}:{sDbg+1}], s[16:17]")
        A(f"    s_mov_b64 s[96:97], s[16:17]")
        A(f"    s_mov_b32 s98, 0")
        A(f"    s_mov_b32 s99, 0x20000")
        pm = sum(1 << (b + pdelay) for b in EP if b + pdelay < 64)
        A(f"    s_mov_b32 s94, {pm & 0xffffffff:#x}")
        A(f"    s_mov_b32 s95, {pm >> 32:#x}")
        A(f"    s_mov_b32 s{sNom}, 0")
        A(f"    s_mov_b32 s{sRef}, -1")
        A(f"    s_mov_b32 s{sEpo}, 0")
        A(f"    v_mov_b32 v{vW}, 0")
        A(f"    v_lshlrev_b32 v{vWA}, 2, v0")
        A(f"    s_mov_b32 s{sRepM}, 0")
        m = sum(1 << b for b in EP)
        if midg < 32:
            assert not hic
            gm = sum(1 << b for b in list(range(midg, 32)) + list(range(endg, 64)))
            A(f"    s_mov_b32 s100, {gm & 0xffffffff:#x}")
            A(f"    s_mov_b32 s101, {gm >> 32:#x}")
        if hic:
            A(f"    s_mov_b32 s100, {m & 0xffffffff:#x}")
            A(f"    s_mov_b32 s101, {m >> 32:#x}")
            A(f"    s_mov_b32 s76, 0")
            A(f"    s_mov_b32 s77, 0")
            A(f"    s_mov_b32 s40, 0")
        A(f"    s_cmp_lt_u32 s2, {nrep}")
        A(f"    s_cselect_b32 s{sEpM}, {m & 0xffffffff:#x}, 0")
        A(f"    s_cselect_b32 s{sEpM+1}, {m >> 32:#x}, 0")
    if stamps:
        A("    s_mov_b64 s[54:55], s[18:19]")
        A("    s_mov_b32 m0, 0")
        for t in range(3):
            A(f"    v_mov_b32 v{vST+t}, 0")
    def zero_acc():
        for j in range(16):
            A(f"    v_mov_b64 v[{ACC+2*j}:{ACC+2*j+1}], 0")
    zero_acc()
    if stamps:
        A(f"    s_waitcnt vmcnt({34 if epos > 0 else 30})")
        A(f"    s_memrealtime s[{ST+4}:{ST+5}]")
    A(f"    s_waitcnt vmcnt({min(30, 2*(16-epos))})")
    if stamps:
        A(f"    s_memrealtime s[{ST+6}:{ST+7}]")
    if not order0:
        A(f"    s_branch L_k{dflt if first < 0 else first}")

    def advance():
        u = lab()
        A(f"    s_add_u32 s{sJ}, s{sJ}, 1")
        A(f"    s_and_b32 s{sJ}, s{sJ}, 31")
        setD()
        A(f"    s_add_u32 s{sCnt}, s{sCnt}, 1")
        A(f"    s_cmp_lg_u32 s{sCnt}, 32")
        A(f"    s_cbranch_scc1 L_adv{u}")
        A(f"    s_add_u32 s24, s24, {bhstep << 20}")
        A(f"    s_addc_u32 s25, s25, 0")
        A(f"    s_cmp_eq_u32 s{sMat}, 1")
        A(f"    s_cselect_b64 s[24:25], s[28:29], s[24:25]")
        A(f"    s_cselect_b64 s[20:21], s[12:13], s[20:21]")
        A(f"    s_mov_b32 s{sCnt}, 0")
        A(f"    s_add_u32 s{sMat}, s{sMat}, 1")
        A(f"    s_cmp_ge_u32 s{sMat}, 4")
        A(f"    s_cselect_b32 s26, 0, s26")
        A(f"    s_cselect_b32 s22, 0, s22")
        A(f"L_adv{u}:")
    def nwait(u, W, half):
        nE = 5 if (ctl and half == 0) else 4
        a = W - 2
        return a + (nE if (u >= 1 and a > 2*u) else 0)
    def nwait_old(u, W):
        a = W - 2
        return a + (4 if (u >= 1 and a >= 2*u) else 0) if not (u >= 1 and a == 2*u) else a
    def mfma(j, e, isK):
        a = ACC + 4*j
        tt = f"v[{T(j,0)}:{T(j,3)}]"; ee = f"v[{e}:{e+3}]"
        if isK: return f"    v_mfma_f32_16x16x32_bf16 v[{a}:{a+3}], {tt}, {ee}, v[{a}:{a+3}]"
        return f"    v_mfma_f32_16x16x32_bf16 v[{a}:{a+3}], {ee}, {tt}, v[{a}:{a+3}]"
    def perm(u, j):
        p = u & 3
        return f"    v_perm_b32 v{T(j,p)}, v{L(u,1)+(j>>1)}, v{L(u,0)+(j>>1)}, s{sSelHi if j & 1 else sSelLo}"
    sLvl = 93
    def ctl_piece(k):
        if k == 0:
            A(f"    s_memrealtime s[{sNow}:{sNow+1}]")
            A(f"    s_add_u32 s{sB}, s{sB}, 1")
            A(f"    s_add_u32 s{sNom}, s{sNom}, {tau * 8 // 10}")
            A(f"    v_readlane_b32 s{sWord}, v{vW}, s{sEpo}")
        elif k == 1:
            A(f"    s_bfe_u32 s92, s{sWord}, {(24 << 16) | (nrep.bit_length()-1):#x}")
            A(f"    s_lshr_b32 s3, s{sWord}, 28")
            A(f"    s_cmp_eq_u32 s3, {nrep}")
            A(f"    s_cselect_b32 s{sRef}, s92, s{sRef}")
            A(f"    s_cselect_b32 s98, 0, s98")
            if hic:
                A(f"    s_cselect_b32 s77, s76, s77")
            A(f"    s_addc_u32 s{sEpo}, s{sEpo}, 0")
            A(f"    s_bitcmp1_b64 s[94:95], s{sB}")
            A(f"    s_cselect_b32 s98, 64, s98")
        elif k == 2:
            A(f"    s_lshr_b32 s3, s{sNom}, 3")
            A("    s_waitcnt lgkmcnt(0)")
            A(f"    s_sub_u32 s{sNow}, s{sNow}, s3")
            if hic:
                A(f"    s_sub_u32 s3, s{sNow}, s40")
                A(f"    s_mov_b32 s40, s{sNow}")
                A(f"    s_cmp_gt_i32 s3, {hic}")
                A(f"    s_cselect_b32 s3, s3, 0")
                A(f"    s_add_u32 s77, s77, s3")
                A(f"    s_add_u32 s76, s76, s3")
                A(f"    s_bitcmp1_b64 s[100:101], s{sB}")
                A(f"    s_cselect_b32 s76, 0, s76")
                A(f"    s_sub_u32 s{sLag}, s{sNow}, s77")
                A(f"    s_sub_u32 s{sLag}, s{sLag}, s{sRef}")
            else:
                A(f"    s_sub_u32 s{sLag}, s{sNow}, s{sRef}")
            A(f"    s_bfe_i32 s{sLag}, s{sLag}, 0x180000")
            kk = lab()
            A(f"    s_bitcmp0_b64 s[{sEpM}:{sEpM+1}], s{sB}")
            A(f"    s_cbranch_scc1 L_rp{kk}")
            A(f"    s_and_b32 s92, s{sNow}, 0xffffff")
            A(f"    s_or_b32 s92, s92, 0x10000000")
            A(f"    s_atomic_add s92, s[{sDbg}:{sDbg+1}], s{sRepM}")
            A(f"    s_add_u32 s{sRepM}, s{sRepM}, 4")
            A(f"L_rp{kk}:")
        elif k == 3:
            A(f"    s_mov_b32 s{sLvl}, 0")
            if midg < 32:
                A(f"    s_bitcmp1_b64 s[100:101], s{sB}")
                A(f"    s_cselect_b32 s3, {endsh}, 0")
                A(f"    s_lshl_b32 s{sLag}, s{sLag}, s3")
            elif endg < 64:
                A(f"    s_cmp_ge_u32 s{sB}, {endg}")
                A(f"    s_cselect_b32 s3, {endsh}, 0")
                A(f"    s_lshl_b32 s{sLag}, s{sLag}, s3")
            for t in TH:
                A(f"    s_cmp_ge_i32 s{sLag}, {t}")
                A(f"    s_addc_u32 s{sLvl}, s{sLvl}, 0")
            A(f"    s_cmp_eq_u32 s{sRef}, -1")
            A(f"    s_cselect_b32 s{sLvl}, {dflt}, s{sLvl}")
            A(f"    s_cmp_ge_u32 s{sB}, {64 - nb}")
            A(f"    s_cselect_b32 s{sLvl}, {len(LV)-1}, s{sLvl}")
            if stamps:
                A(f"    s_mov_b32 s3, m0")
                A(f"    s_mov_b32 m0, s{sB}")
                A(f"    s_nop 0")
                A(f"    v_writelane_b32 v{vST+2}, s{sLag}, m0")
                A(f"    s_mov_b32 m0, s3")
    def body(W, isK):
        early = W <= 30 and late
        for half in range(2):
            advance()
            if half == 1:
                k = lab()
                A(f"    s_cmp_eq_u32 s{sPend}, 0")
                A(f"    s_cbranch_scc1 L_np{k}")
                A(f"    s_mov_b32 s{sPend}, 0")
                A("    s_waitcnt lgkmcnt(0)")
                A("    s_barrier")
                A(f"L_np{k}:")
            for u in range(16):
                c, p = u >> 2, u & 3
                wt = f"    s_waitcnt vmcnt({nwait(u, W, half)})"
                wt2 = None
                if single and early:
                    nE = 5 if (ctl and half == 0) else 4
                    a1 = W - 1
                    wt = f"    s_waitcnt vmcnt({a1 + (nE if (u >= 1 and a1 > 2*u) else 0)})"
                    wt2 = f"    s_waitcnt vmcnt({a1 + (nE if a1 > 2*u + 1 else 0)})"
                if not early:
                    A(wt)
                elif u == 0 and half == 0:
                    A("    s_waitcnt vmcnt(30)")
                P = [perm(u, j) for j in range(8)]
                if p == 0 and not (half == 0 and c == 0):
                    ep_ = E(half, c-1) if c else E(half ^ 1, 3)
                    M = [mfma(j, ep_, isK) for j in range(4, 8)]
                    seq = []
                    for t in range(4):
                        seq += [M[t], P[2*t], P[2*t+1]]
                    tail = []
                elif p == 3:
                    e = E(half, c)
                    M = [mfma(j, e, isK) for j in range(8)]
                    seq = [P[0], P[1], P[2], M[0], P[3], P[4], M[1], P[5], P[6], M[2], P[7]]
                    tail = [M[3]] + (M[4:] if (half == 1 and c == 3) else [])
                else:
                    seq, tail = P, []
                o.extend(seq)
                if early:
                    if tail: A(tail[0]); tail = tail[1:]
                    A(wt)
                if stamps and u == 15:
                    A(f"    s_memrealtime s[{ST+12}:{ST+13}]")
                if u == 0:
                    ldE(half ^ 1)
                    if ctl and half == 0: A(f"    buffer_load_dword v{vW}, v{vWA}, s[96:99], 0 offen sc1")
                A(ld(u, 0))
                if tail and not early: A(tail[0]); tail = tail[1:]
                if wt2: A(wt2)
                A(ld(u, 1))
                o.extend(tail)
                if inl and half == 0 and u in (0, 1, 2):
                    k = lab()
                    A(f"    s_cmp_lg_u32 s{sPend}, 1")
                    A(f"    s_cbranch_scc1 L_nd{k}")
                    if u < 2:
                        for j in range(4*u, 4*u + 4):
                            A(f"    ds_write_b128 v4, v[{ACC+4*j}:{ACC+4*j+3}] offset:{1024*j}")
                        if u == 1:
                            for j in range(8):
                                A(f"    v_mov_b64 v[{ACC+2*j}:{ACC+2*j+1}], 0")
                    else:
                        for j in range(8, 16):
                            A(f"    v_mov_b64 v[{ACC+2*j}:{ACC+2*j+1}], 0")
                    A(f"L_nd{k}:")
                if ctl and half == 1 and u in (5, 8, 9, 12):
                    ctl_piece((5, 8, 9, 12).index(u))
                if not ctl and half == 1 and u == 12:
                    A(f"    s_add_u32 s{sB}, s{sB}, 1")
                    A(f"    s_cmp_ge_u32 s{sB}, {64 - nb}")
                    A(f"    s_cselect_b32 s{sLvl}, {len(LV)-1}, {dflt}")
            if stamps:
                A("    s_waitcnt lgkmcnt(0)")
                A(f"    s_cmp_ge_u32 m0, 64")
                k = lab()
                A(f"    s_cbranch_scc1 L_s{k}")
                A(f"    v_writelane_b32 v{vST}, s{ST+12}, m0")
                A(f"    s_branch L_t{k}")
                A(f"L_s{k}:")
                A(f"    v_writelane_b32 v{vST+1}, s{ST+12}, m0")
                A(f"L_t{k}:")
                A("    s_add_u32 m0, m0, 1")
    used = [i for i in range(len(LV)) if ctl or i in (dflt, len(LV)-1)]
    def controller(ph):
        A(f"L_{ph}_top:")
        for i in used[:-1]:
            A(f"    s_cmp_eq_u32 s{sLvl}, {i}")
            A(f"    s_cbranch_scc1 L_{ph}{i}")
        A(f"    s_branch L_{ph}{used[-1]}")
    def versions(ph, isK):
        for i in (sorted(used, key=lambda z: z != dflt) if order0 else used):
            A("    .p2align 3")
            A(f"L_{ph}{i}:")
            body(LV[i], isK)
            A(f"    s_sub_u32 s{sLoop}, s{sLoop}, 1")
            A(f"    s_cbranch_scc1 L_{ph}_done")
            A(f"    s_cmp_eq_u32 s{sLvl}, {i}")
            A(f"    s_cbranch_scc1 L_{ph}{i}")
            A(f"    s_branch L_{ph}_top")
    def dump(off_sgpr_lines):
        o.extend(off_sgpr_lines[:-1] if inl else off_sgpr_lines)
        if not inl:
            for j in range(8):
                A(f"    ds_write_b128 v4, v[{ACC+4*j}:{ACC+4*j+3}] offset:{1024*j}")
        A(f"    s_mov_b32 s{sPend}, 1")
        A(f"    s_mov_b32 s{sLoop}, 15")
        if not inl:
            zero_acc()
    if not order0: controller("k")
    versions("k", True)
    if order0: controller("k")
    A("L_k_done:")
    dump([f"    s_lshl_b32 s3, s{sPh}, 13", f"    v_add_u32 v4, s3, v{vLds}", f"    s_add_u32 s{sPh}, s{sPh}, 1", "    s_nop 4"])
    A(f"    s_cmp_lt_u32 s{sPh}, 2")
    A("    s_cbranch_scc1 L_k_top")
    controller("v")
    versions("v", False)
    A("L_v_done:")
    A(f"    s_cmp_lg_u32 s{sPh}, 2")
    A("    s_cbranch_scc1 L_last")
    dump([f"    v_add_u32 v4, {LDS_V}, v{vLds}", f"    s_mov_b32 s{sPh}, 3", "    s_nop 3"])
    A("    s_branch L_v_top")
    A("L_last:")
    if not hstore:
        A("    s_barrier")
    A(f"    ds_read_b64 v[4:5], v{vLds} offset:{LDS_P + 1024}")
    A(f"    v_cmp_gt_u32 vcc, 0x100, v{vLds}")
    A("    s_nop 2")
    R = T0
    def vfinal(acc, R, pv, srd, A=A, gate=False):
        for j in range(8):
            A(f"    v_cvt_pk_bf16_f32 v{R+2*j}, v{acc+4*j}, v{acc+4*j+1}")
            A(f"    v_cvt_pk_bf16_f32 v{R+2*j+1}, v{acc+4*j+2}, v{acc+4*j+3}")
        A("    s_waitcnt lgkmcnt(0)")
        A("    s_nop 0")
        for j in range(8):
            A(f"    v_mfma_f32_16x16x16_bf16 v[{acc+4*j}:{acc+4*j+3}], v[{pv}:{pv+1}], v[{R+2*j}:{R+2*j+1}], 0")
        A("    s_and_saveexec_b64 s[52:53], vcc")
        A("    s_nop 4")
        for i in range(4):
            for t in range(4):
                A(f"    v_cvt_pk_bf16_f32 v{R+16+4*i+t}, v{acc+4*(2*t)+i}, v{acc+4*(2*t+1)+i}")
            if not gate:
                A(f"    buffer_store_dwordx4 v[{R+16+4*i}:{R+16+4*i+3}], v{vLds}, s[{srd}:{srd+3}], 0 offen offset:{256*i} {polS}".rstrip())
        if gate:
            A("    s_barrier")
            for i in range(4):
                A(f"    buffer_store_dwordx4 v[{R+16+4*i}:{R+16+4*i+3}], v{vLds}, s[{srd}:{srd+3}], 0 offen offset:{256*i} {polS}".rstrip())
    vfinal(ACC, R, 4, 44)
    if stamps:
        A("    s_mov_b64 exec, s[52:53]")
        A(f"    s_memrealtime s[{ST+8}:{ST+9}]")
        A(f"    s_getreg_b32 s{ST+10}, hwreg(HW_REG_HW_ID)")
        A(f"    s_getreg_b32 s{ST+11}, hwreg(HW_REG_XCC_ID)")
        A("    s_waitcnt lgkmcnt(0)")
        A(f"    s_lshl_b32 s3, s2, 11")
        A(f"    s_add_u32 s3, s3, 0x100000")
        A(f"    v_lshl_add_u32 v4, v0, 2, s3")
        A(f"    global_store_dword v4, v{vST}, s[54:55]")
        A(f"    global_store_dword v4, v{vST+1}, s[54:55] offset:256")
        A(f"    global_store_dword v4, v{vST+2}, s[54:55] offset:1024")
        A(f"    s_lshl_b32 s3, s2, 6")
        A("    s_waitcnt vmcnt(0)")
        A(f"    v_mov_b32 v4, s3")
        for t in range(12):
            A(f"    v_mov_b32 v{72+t}, s{ST+t}")
        A("    s_mov_b64 exec, 1")
        for t in range(3):
            A(f"    global_store_dwordx4 v4, v[{72+4*t}:{75+4*t}], s[54:55] offset:{16*t}")
    A("L_end:")
    A("    s_endpgm")

    A("L_helper:")
    Q, KP, S = 48, 16, 8
    A(f"    v_and_b32 v{vLane}, 63, v0")
    if mini:
        A("    s_lshr_b32 s3, s2, 3")
        A("    s_sub_u32 s58, s3, 1")
        A(f"    s_cmp_ge_u32 s58, {mini}")
        A("    s_cbranch_scc1 L_nomini")
        A("    s_and_b32 s58, s3, 3")
        A("    s_lshl_b32 s58, s58, 7")
        A("    s_lshr_b32 s3, s3, 2")
        A("    s_lshl_b32 s3, s3, 10")
        A("    s_add_u32 s3, s3, s58")
        A("    v_lshlrev_b32 v1, 13, v5")
        A("    v_lshl_add_u32 v1, v4, 9, v1")
        A("    v_add_u32 v1, s3, v1")
        A("    global_load_dword v26, v1, s[10:11]")
        A("L_nomini:")
    if minic:
        A("    s_lshr_b32 s3, s2, 3")
        A("    s_cmp_lg_u32 s3, 8")
        A("    s_cbranch_scc1 L_nominic")
        A("    s_getpc_b64 s[56:57]")
        A("L_pc2:")
        A(f"    s_sub_u32 s56, s56, L_pc2-L_k{dflt}")
        A("    s_subb_u32 s57, s57, 0")
        A(f"    v_lshlrev_b32 v1, 6, v{vLane}")
        A("    global_load_dword v27, v1, s[56:57]")
        A("L_nominic:")
    if hgate:
        A("    s_barrier")
    if pf & 3:
        A("    s_lshr_b32 s3, s2, 3")
        A("    s_lshl_b32 s3, s3, 12")
        A(f"    v_lshl_add_u32 v1, v{vLane}, 6, s3")
        if pf & 2:
            A("    global_load_dword v20, v1, s[10:11]")
            if pace: A("    s_waitcnt vmcnt(0)")
        if pf & 1:
            A("    global_load_dword v21, v1, s[12:13]")
            if pace: A("    s_waitcnt vmcnt(0)")
    if pf & 8:
        A("    s_getpc_b64 s[56:57]")
        A("L_pc:")
        A(f"    s_sub_u32 s56, s56, L_pc-{NAME}")
        A("    s_subb_u32 s57, s57, 0")
        A("    s_lshr_b32 s3, s2, 3")
        A("    s_lshl_b32 s3, s3, 11")
        A(f"    v_lshl_add_u32 v1, v{vLane}, 5, s3")
        A(f"    v_min_u32 v1, L_codeend-{NAME}-4, v1")
        A("    global_load_dword v25, v1, s[56:57]")
        if pace: A("    s_waitcnt vmcnt(0)")
    if pf & 4:
        A(f"    s_add_u32 s56, s6, s42")
        A(f"    s_addc_u32 s57, s7, 0")
        A(f"    s_add_u32 s58, s8, s42")
        A(f"    s_addc_u32 s59, s9, 0")
        A(f"    v_mov_b32 v1, 0")
        A(f"    v_mov_b32 v2, {bhstep << 20}")
        A("    s_mov_b64 exec, 1")
        if bhstep > 1:
            A("    global_load_dword v22, v2, s[56:57] nt")
            if pace: A("    s_waitcnt vmcnt(0)")
            A("    global_load_dword v23, v2, s[58:59] nt")
            if pace: A("    s_waitcnt vmcnt(0)")
        A("    global_load_dword v24, v1, s[58:59] nt")
        if pace: A("    s_waitcnt vmcnt(0)")
        A("    s_mov_b64 exec, -1")
    A(f"    s_lshl_b32 s43, s{sP}, {10 + bhsh}")
    A("    s_add_u32 s28, s4, s43")
    A("    s_addc_u32 s29, s5, 0")
    A("    s_mov_b32 s30, 1024")
    A("    s_mov_b32 s31, 0x20000")
    A("    s_add_u32 s44, s14, s43")
    A("    s_addc_u32 s45, s15, 0")
    A(f"    s_mov_b32 s46, 1024")
    A("    s_mov_b32 s47, 0x20000")
    A(f"    v_lshrrev_b32 v4, 4, v{vLane}       ; g")
    A("    v_lshlrev_b32 v7, 8, v5")
    A("    v_lshl_add_u32 v7, v4, 6, v7       ; c*256 + g*64")
    A(f"    v_lshlrev_b32 v{vLds}, 4, v{vLane}")
    A(f"    v_mov_b32 v2, v{vLds}")
    A(f"    v_mov_b32 v3, v{vLds}")
    A("    s_mov_b32 s48, 0x3db504f3     ; 128^-0.5 as f32")
    A("    s_mov_b32 s49, 0x3fb8aa3b     ; log2(e)")
    A("    s_mov_b32 s50, 0xffff0000")
    A(f"    v_xor_b32 v14, 16, v{vLane}")
    A(f"    v_lshlrev_b32 v14, 2, v14")
    A(f"    v_xor_b32 v15, 32, v{vLane}")
    A(f"    v_lshlrev_b32 v15, 2, v15")
    A(f"    s_mov_b32 s{sPh}, 0")
    A("L_hbh:")
    for m in range(4):
        A(f"    buffer_load_dwordx4 v[{Q+4*m}:{Q+4*m+3}], v7, s[28:31], 0 offen offset:{16*m}")
    A("    s_barrier")
    for j in range(8):
        A(f"    ds_read_b128 v[{KP+4*j}:{KP+4*j+3}], v2 offset:{1024*j}")
    R = 64
    for i in range(4):
        A(f"    v_mov_b32 v{S+i}, 0")
    A("    s_waitcnt lgkmcnt(0)")
    for m in range(4):
        for t in range(4):
            A(f"    v_cvt_pk_bf16_f32 v{R+4*m+t}, v{KP+4*(2*t)+m}, v{KP+4*(2*t+1)+m}")
    A("    s_waitcnt vmcnt(0)")
    A("    s_nop 0")
    for m in range(4):
        A(f"    v_mfma_f32_16x16x32_bf16 v[{S}:{S+3}], v[{R+4*m}:{R+4*m+3}], v[{Q+4*m}:{Q+4*m+3}], v[{S}:{S+3}]")
    A("    s_nop 7")
    def rnd():
        A(f"    v_cvt_pk_bf16_f32 v12, v{S}, v{S+1}")
        A(f"    v_cvt_pk_bf16_f32 v13, v{S+2}, v{S+3}")
        A(f"    v_lshlrev_b32 v{S}, 16, v12")
        A(f"    v_and_b32 v{S+1}, s50, v12")
        A(f"    v_lshlrev_b32 v{S+2}, 16, v13")
        A(f"    v_and_b32 v{S+3}, s50, v13")
    rnd()
    for i in range(4):
        A(f"    v_mul_f32 v{S+i}, s48, v{S+i}")
    rnd()
    A(f"    v_max_f32 v12, v{S}, v{S+1}")
    A(f"    v_max3_f32 v12, v{S+2}, v{S+3}, v12")
    A("    ds_bpermute_b32 v13, v14, v12")
    A("    s_waitcnt lgkmcnt(0)")
    A("    v_max_f32 v12, v12, v13")
    A("    ds_bpermute_b32 v13, v15, v12")
    A("    s_waitcnt lgkmcnt(0)")
    A("    v_max_f32 v12, v12, v13")
    for i in range(4):
        A(f"    v_sub_f32 v{S+i}, v{S+i}, v12")
    for i in range(4):
        A(f"    v_mul_f32 v{S+i}, s49, v{S+i}")
    for i in range(4):
        A(f"    v_exp_f32 v{S+i}, v{S+i}")
    A("    s_nop 0")
    A(f"    v_add_f32 v12, v{S}, v{S+1}")
    A(f"    v_add_f32 v13, v{S+2}, v{S+3}")
    A("    v_add_f32 v12, v12, v13")
    A("    ds_bpermute_b32 v13, v14, v12")
    A("    s_waitcnt lgkmcnt(0)")
    A("    v_add_f32 v12, v12, v13")
    A("    ds_bpermute_b32 v13, v15, v12")
    A("    s_waitcnt lgkmcnt(0)")
    A("    v_add_f32 v12, v12, v13")
    A("    v_rcp_f32 v12, v12")
    A("    s_nop 0")
    for i in range(4):
        A(f"    v_mul_f32 v{S+i}, v{S+i}, v12")
    A(f"    v_cvt_pk_bf16_f32 v12, v{S}, v{S+1}")
    A(f"    v_cvt_pk_bf16_f32 v13, v{S+2}, v{S+3}")
    A(f"    ds_write_b64 v3, v[12:13] offset:{LDS_P}")
    A(f"    v_add_u32 v3, 1024, v3")
    A(f"    v_add_u32 v2, 8192, v2")
    A(f"    s_add_u32 s28, s28, {bhstep*1024}")
    A("    s_addc_u32 s29, s29, 0")
    A(f"    s_add_u32 s{sPh}, s{sPh}, 1")
    A(f"    s_cmp_lt_u32 s{sPh}, 2")
    A("    s_cbranch_scc1 L_hbh")
    A("    s_waitcnt lgkmcnt(0)")
    A("    s_barrier")
    A(f"    ds_read_b64 v[4:5], v{vLds} offset:{LDS_P}")
    for j in range(8):
        A(f"    ds_read_b128 v[{KP+4*j}:{KP+4*j+3}], v{vLds} offset:{LDS_V + 1024*j}")
    A(f"    v_cmp_gt_u32 vcc, 0x100, v{vLds}")
    A("    s_waitcnt lgkmcnt(0)")
    vfinal(KP, 64, 4, 44, gate=not hstore)
    A("    s_endpgm")
    A("L_codeend:")
    A('.section .rodata,"a"')
    A(".p2align 6")
    A(f".amdhsa_kernel {NAME}")
    A(f"  .amdhsa_next_free_vgpr {nv}")
    A("  .amdhsa_next_free_sgpr 102")
    A(f"  .amdhsa_accum_offset {(nv+3)//4*4}")
    A("  .amdhsa_group_segment_fixed_size 0")
    A("  .amdhsa_kernarg_size 64")
    A("  .amdhsa_user_sgpr_count 2")
    A("  .amdhsa_user_sgpr_kernarg_segment_ptr 1")
    A("  .amdhsa_system_sgpr_workgroup_id_x 1")
    A("  .amdhsa_float_denorm_mode_32 3")
    A(".end_amdhsa_kernel")
    return "\n".join(o) + "\n"

if __name__ == "__main__":
    main(gen)
```
